```python
import torch

def _softmax(x, axis=-1):
    return torch.softmax(x, dim=axis)
def _gelu(x):
    return torch.nn.functional.gelu(x, approximate="tanh")
def _silu(x):
    return torch.nn.functional.silu(x)
def _sigmoid(x):
    return torch.sigmoid(x)
def _layernorm(x, axis=-1, eps=1e-5):
    m = x.mean(dim=axis, keepdim=True)
    v = x.var(dim=axis, keepdim=True, unbiased=False)
    return (x - m) / torch.sqrt(v + eps)
def _scatter_add(tgt, idx, src, axis=0):
    return tgt.clone().index_add_(axis, idx, src)
def _segment_sum(src, seg, n):
    out = torch.zeros((n,) + src.shape[1:], dtype=src.dtype)
    return out.index_add_(0, seg, src)
def _pad(x, pw):
    flat = tuple(v for pair in reversed(pw) for v in pair)
    return torch.nn.functional.pad(x, flat)

kernel_name = 'parallel_sum__gqa_block_cached__glu_gated_swiglu__decode'

def setup_inputs():

    _w = (lambda a: (lambda t: t.to(torch.bfloat16) if t.is_floating_point() else t)(torch.as_tensor(a)))
    def _A_setup():
        B, Sq, D = 1, 1, 640
        Hq, Hkv, Sk, Dh = 32, 32, 4096, 192
        assert Hq % Hkv == 0, (Hq, Hkv)
        return {
            "x": _w((lambda *s: torch.randn(*s, dtype=torch.bfloat16) * 0.05)(B, Sq, D)),
            "k_cache": _w((lambda *s: torch.randn(*s, dtype=torch.bfloat16) * 1.6)(B, Hkv, Sk, Dh)),
            "v_cache": _w((lambda *s: torch.randn(*s, dtype=torch.bfloat16) * 0.8)(B, Hkv, Sk, Dh)),
            "wq": _w((lambda *s: torch.randn(*s, dtype=torch.bfloat16) * 1.6)(D, Hq * Dh) * (D ** -0.5)),
            "wo": _w((lambda *s: torch.randn(*s, dtype=torch.bfloat16) * 0.8)(Hq * Dh, D) * ((Hq * Dh) ** -0.5)),
        }
    _A_in = _A_setup()

    def _B_setup():
        B, S, D, F = 1, 1, 640, 1536
        return {
            "x": _w((lambda *s: torch.randn(*s, dtype=torch.bfloat16) * 0.05)(B, S, D)),
            "w1": _w((lambda *s: torch.randn(*s, dtype=torch.bfloat16) * 0.4)(D, F) * (2.0 / D) ** 0.5),
            "w3": _w((lambda *s: torch.randn(*s, dtype=torch.bfloat16) * 0.4)(D, F) * (2.0 / D) ** 0.5),
            "w2": _w((lambda *s: torch.randn(*s, dtype=torch.bfloat16) * 0.4)(F, D) * (2.0 / F) ** 0.5),
        }
    _B_in = _B_setup()

    return {
        "A_x": _A_in["x"],
        "A_k_cache": _A_in["k_cache"],
        "A_v_cache": _A_in["v_cache"],
        "A_wq": _A_in["wq"],
        "A_wo": _A_in["wo"],
        "B_x": _B_in["x"],
        "B_w1": _B_in["w1"],
        "B_w3": _B_in["w3"],
        "B_w2": _B_in["w2"],
    }

def reference(A_x, A_k_cache, A_v_cache, A_wq, A_wo, B_x, B_w1, B_w3, B_w2):
    def _A_ref(x, k_cache, v_cache, wq, wo):
        B, Sq, D = x.shape
        Hq, Dh = 32, 192
        Hkv = k_cache.shape[1]
        rep = Hq // Hkv
        q = (lambda x, *d: x.permute(*d))((x @ wq).reshape(B, Sq, Hq, Dh), 0, 2, 1, 3)
        k = (lambda x, n, axis: torch.repeat_interleave(x, n, dim=axis))(k_cache, rep, axis=1)
        v = (lambda x, n, axis: torch.repeat_interleave(x, n, dim=axis))(v_cache, rep, axis=1)
        scores = torch.einsum("bhqd,bhkd->bhqk", q, k) * (Dh ** -0.5)
        p = _softmax(scores, axis=-1)
        o = torch.einsum("bhqk,bhkd->bhqd", p, v)
        return (lambda x, *d: x.permute(*d))(o, 0, 2, 1, 3).reshape(B, Sq, Hq * Dh) @ wo

    def _B_ref(x, w1, w3, w2):
        gate = torch.einsum("bsd,df->bsf", x, w1)
        up = torch.einsum("bsd,df->bsf", x, w3)
        h = _silu(gate) * up
        out = torch.einsum("bsf,fd->bsd", h, w2)
        return out

    x = A_x
    xn = _layernorm(x, axis=-1)
    return x + _A_ref(xn, A_k_cache, A_v_cache, A_wq, A_wo) + _B_ref(xn, B_w1, B_w3, B_w2)
```

```python
NAME = "parallel_sum__gqa_block_cached__glu_gated_swiglu__decode"
HEADER = open("cdna_kernels/%s.s.ref" % NAME).read().split("; Override launch")[0]

class Asm:
    def __init__(self):
        self.lines = []
    def __call__(self, s=""):
        for l in s.split("\n"):
            l = l.strip()
            if l:
                self.lines.append(("" if l.endswith(":") else "    ") + l)
    def text(self):
        return "\n".join(self.lines) + "\n"

def wrap(body, grid, block, lds, vgpr, sgpr=102, accum=None):
    accum = accum or ((min(vgpr, 256) + 3) // 4 * 4)
    return (HEADER + "; @launch grid=(%d,1,1) block=(%d,1,1) lds=%d\n" % (grid, block, lds) +
            '.amdgcn_target "amdgcn-amd-amdhsa--gfx950"\n.text\n.globl %s_kernel\n.p2align 8\n.type %s_kernel,@function\n%s_kernel:\n' % (NAME, NAME, NAME)
            + body +
            '.section .rodata,"a"\n.p2align 6\n.amdhsa_kernel %s_kernel\n' % NAME +
            "  .amdhsa_next_free_vgpr %d\n  .amdhsa_next_free_sgpr %d\n  .amdhsa_accum_offset %d\n" % (vgpr, sgpr, accum) +
            "  .amdhsa_group_segment_fixed_size 0\n  .amdhsa_kernarg_size 96\n  .amdhsa_user_sgpr_count 2\n"
            "  .amdhsa_user_sgpr_kernarg_segment_ptr 1\n  .amdhsa_system_sgpr_workgroup_id_x 1\n"
            "  .amdhsa_float_denorm_mode_32 3\n"
            ".end_amdhsa_kernel\n")
```

```python
import re

def regs_of(tok):
    tok = tok.strip()
    neg = tok.lstrip("-")
    if neg.startswith("abs(") or neg.startswith("|"):
        neg = neg.replace("abs(", "").replace(")", "").replace("|", "")
    m = re.fullmatch(r"([vas])\[(\d+):(\d+)\]", neg)
    if m:
        return {(m.group(1), i) for i in range(int(m.group(2)), int(m.group(3)) + 1)}
    m = re.fullmatch(r"([vas])(\d+)", neg)
    if m:
        return {(m.group(1), int(m.group(2)))}
    if neg == "vcc":
        return {("s", "vcc")}
    if neg == "exec":
        return {("s", "exec")}
    if neg == "m0":
        return {("s", "m0")}
    return set()

TRANS = ("v_exp_f32", "v_log_f32", "v_rcp_f32", "v_rsq_f32", "v_sqrt_f32", "v_sin_f32", "v_cos_f32")

class I:
    def __init__(self, line):
        self.line = line
        s = line.split(";")[0].strip()
        self.label = s.endswith(":")
        self.op = s.split()[0] if s and not self.label else ""
        rest = s[len(self.op):].strip() if self.op else ""
        ops = [o.strip() for o in re.split(r",(?![^\[]*\])", rest)] if rest else []
        if ops:
            ops[-1], *mods = ops[-1].split()
            self.mods = " ".join(mods)
        else:
            self.mods = ""
        self.ops = ops
        op = self.op
        self.mfma = op.startswith("v_mfma")
        self.valu = op.startswith("v_") and not self.mfma
        self.dpp = "_dpp" in op
        self.perm = op.startswith("v_permlane")
        self.dot = op.startswith("v_dot")
        self.trans = any(op.startswith(t) for t in TRANS)
        self.vmem = op.startswith(("buffer_", "global_", "flat_"))
        self.ds = op.startswith("ds_")
        self.rdlane = op.startswith(("v_readlane", "v_readfirstlane"))
        R = [regs_of(o) for o in ops]
        self.w = set(); self.r = set(); self.srcc = set(); self.ab = set(); self.sdata = set()
        if self.mfma:
            self.w = R[0]; self.ab = R[1] | R[2]; self.srcc = R[3]; self.r = self.ab | self.srcc
            self.passes = 8 if "32x32x16" in op else 4
        elif self.valu:
            self.w = set(R[0]); self.r = set().union(*R[1:]) if len(R) > 1 else set()
            if self.perm:
                self.w |= R[1]; self.r |= R[0]
            if op.startswith(("v_fmac", "v_dot2c", "v_writelane")) or (self.dpp):
                self.r |= R[0]
            if op.startswith(("v_add_co", "v_sub_co", "v_addc_co")):
                self.w |= R[1]
        elif self.vmem:
            if "load" in op and "lds" not in self.mods.split() and "_lds_" not in op:
                self.w = R[0]; self.r = set().union(*R[1:])
            else:
                self.r = set().union(*R) if R else set()
                if "store" in op and ("x3" in op or "x4" in op):
                    self.sdata = R[0] if op.startswith("buffer") else R[1]
        elif self.ds:
            if op.startswith(("ds_read", "ds_bpermute", "ds_permute", "ds_swizzle")):
                self.w = R[0]; self.r = set().union(*R[1:])
            else:
                self.r = set().union(*R)
        elif op.startswith("s_"):
            if op.startswith(("s_cmp", "s_cbranch", "s_branch", "s_waitcnt", "s_nop", "s_barrier", "s_endpgm", "s_setprio", "s_sleep", "s_bitcmp")):
                self.r = set().union(*R) if R else set()
            else:
                self.w = R[0] if R else set(); self.r = set().union(*R[1:]) if len(R) > 1 else set()
        self.states = 1
        if op == "s_nop":
            self.states = int(ops[0], 0) + 1
        if self.label or not op or op.startswith("."):
            self.states = 0

def need(p, c):
    n = 0
    vw = {x for x in p.w if x[0] in "va"}
    sw = {x for x in p.w if x[0] == "s"}
    if p.valu:
        if c.dpp and vw & c.r: n = max(n, 2)
        if c.perm and vw & c.r: n = max(n, 2)
        if c.mfma and vw & c.r: n = max(n, 2)
        if c.rdlane and vw & c.r: n = max(n, 1)
        if p.trans and c.valu and vw & c.r: n = max(n, 1)
        if p.trans and c.mfma and vw & c.r: n = max(n, 2)
        if sw:
            if c.valu and sw & c.r: n = max(n, 4 if c.op.startswith(("v_readlane", "v_writelane")) else 2)
            if c.vmem and sw & c.r: n = max(n, 5)
            if c.op.startswith("s_") and sw & c.r: n = max(n, 1)
        if p.dot:
            if c.op == p.op:
                ab = set().union(*[regs_of(o) for o in c.ops[1:3]])
                if vw & ab: n = max(n, 3)
            elif vw & (c.r | c.w): n = max(n, 3)
    if p.mfma:
        big = {4: 8, 8: 12}[p.passes]
        if c.mfma:
            if p.w & c.ab: n = max(n, big)
            if p.w & c.srcc and p.w != c.srcc: n = max(n, {4: 6, 8: 10}[p.passes])
            if p.w & c.w and not (p.w & c.srcc): n = max(n, big)
        elif (c.valu or c.vmem or c.ds) and p.w & (c.r | c.w): n = max(n, big)
        if c.valu and p.srcc & c.w: n = max(n, {4: 3, 8: 7}[p.passes])
    if p.sdata and p.sdata & c.w:
        n = max(n, 2)
    if p.op.startswith("s_") and ("s", "m0") in p.w and c.vmem and "lds" in c.line:
        n = max(n, 1)
    return n

def fix(lines, verbose=False):
    out = []; ins = []
    added = 0
    for l in lines:
        c = I(l)
        if c.states:
            dist = 0; req = 0
            for p in reversed(ins):
                if dist >= 20: break
                n = need(p, c)
                if n > dist: req = max(req, n - dist)
                dist += p.states
            if req:
                nop = "    s_nop %d" % (req - 1)
                out.append(nop); ins.append(I(nop)); added += req
        out.append(l); ins.append(c)
    if verbose: print("hazard pass: %d wait states added" % added)
    return out
```

```python
import sys
from gen_common import *
import hazard

QOFF = 4096
OOFF = 1 << 20
SOFF = OOFF + (1 << 18)
FOFF = SOFF + (1 << 14)
STAMP_OFF = 128 << 20
OOB = 0x40000000
LQ, LH, LS, LO, LF = 0, 384, 640, 1024, 9728
SO_STR, SF_STR = 1088, 528
LDS_BYTES = LF + 16 * SF_STR

def f2u(x):
    import struct
    return struct.unpack("<I", struct.pack("<f", x))[0]

def gen(stamps=False, pol="nt", polw="nt", polo="nt", n1=16, n2=16, vo=(9, 0, 0, 0, 0, 0, 15), vy=(0, 0, 0, 0, 0, 8, 0),
        spol="sc1", lpol="sc1", fin_cons=False, prio=False, spin=100000):
    assert sum(vo) == 24 and n2 + sum(vy) == 24
    A = Asm()
    X, K, V, WA, W3, WO, W2, OUT, WS = 28, 32, 36, 40, 44, 48, 52, 56, 60
    srd = lambda b: "s[%d:%d]" % (b, b + 3)
    sW, sH, sS, sG, sTAG, sCNT, sT0, sT1, sSTR = "s3", "s64", "s65", "s66", "s67", "s68", "s69", "s70", "s71"
    sKV = ["s72", "s73", "s74", "s75"]
    sAO = "s76"; sQW = "s77"; sQR = "s78"; sT2 = "s79"
    stamp_regs = list(range(80, 102, 2)) + list(range(4, 28, 2))
    nst = [0]
    def stamp(i):
        if stamps:
            r = stamp_regs[i]
            A("s_memrealtime s[%d:%d]" % (r, r + 1)); nst[0] = max(nst[0], i + 1)
    vL, vKV, vM = 0, 1, 2
    vR, vC = 6, 7
    vT = 8
    vQ = 24
    vS = 36
    vD = 44
    vA2 = 56
    vF, vX2, vWOo, vW2o = 60, 61, 62, 63
    KR, VR = 64, 160
    WOR, PA = 64, 96
    q4 = lambda r: "v[%d:%d]" % (r, r + 3)

    def kvload(which, n):
        g, t = divmod(n, 3)
        base = (KR if which == "K" else VR) + 4 * n
        A("buffer_load_dwordx4 %s, v%d, %s, %s offen offset:%d %s" % (q4(base), vKV, srd(K if which == "K" else V), sKV[g >> 1], (g & 1) * 3072 + 128 * t, pol))

    def allreduce(op, v, t):
        for m in ("quad_perm:[1,0,3,2]", "quad_perm:[2,3,0,1]", "row_half_mirror", "row_mirror"):
            A("%s_dpp v%d, v%d, v%d %s row_mask:0xf bank_mask:0xf" % (op, v, v, v, m))
        rows(op, v, t)
    def rows(op, v, t):
        A("v_mov_b32 v%d, v%d\nv_permlane16_swap_b32 v%d, v%d\n%s v%d, v%d, v%d" % (t, v, v, t, op, v, v, t))
        A("v_mov_b32 v%d, v%d\nv_permlane32_swap_b32 v%d, v%d\n%s v%d, v%d, v%d" % (t, v, v, t, op, v, v, t))
    def bfly8(op, regs):
        for m in ("quad_perm:[1,0,3,2]", "quad_perm:[2,3,0,1]", "row_half_mirror"):
            for v in regs:
                A("%s_dpp v%d, v%d, v%d %s row_mask:0xf bank_mask:0xf" % (op, v, v, v, m))
    def aop(dst, dup):
        for i in range(4):
            A("v_and_b32 v%d, v%d, v%d" % (dst + i, dup, vM + i))
    def squeeze(pairs):
        for d, z in pairs:
            A("v_permlane32_swap_b32 v%d, v%d\nv_permlane32_swap_b32 v%d, v%d" % (d, d + 1, d + 2, d + 3))
        for d, z in pairs:
            A("v_add_f32_dpp v%d, v%d, v%d row_ror:8 row_mask:0xf bank_mask:0x3" % (z, d + 1, d))
        for d, z in pairs:
            A("v_add_f32_dpp v%d, v%d, v%d row_ror:8 row_mask:0xf bank_mask:0xc" % (z, d + 2, d + 3))

    stamp(0)
    A("s_cmp_ge_u32 s2, 256\ns_cbranch_scc1 L_end")
    A("s_load_dwordx16 s[4:19], s[0:1], 0\ns_load_dwordx8 s[20:27], s[0:1], 64")
    A("v_lshrrev_b32 v1, 6, v0\nv_and_b32 v0, 63, v0\nv_readfirstlane_b32 %s, v1" % sW)
    A("s_and_b32 %s, s2, 7\ns_lshr_b32 %s, s2, 3\ns_lshl_b32 %s, %s, 5\ns_add_u32 %s, %s, %s" % (sT0, sT1, sT0, sT0, sG, sT0, sT1))
    A("s_lshr_b32 %s, %s, 3\ns_and_b32 %s, %s, 7" % (sH, sG, sS, sG))
    A("v_lshrrev_b32 v%d, 3, v0\nv_and_b32 v%d, 7, v0" % (vR, vC))
    A("v_mul_u32_u24 v%d, 384, v%d\nv_lshl_add_u32 v%d, v%d, 4, v%d" % (vKV, vR, vKV, vC, vKV))
    A("s_mul_i32 %s, %s, 196608\ns_mul_i32 %s, %s, 24576\ns_add_u32 %s, %s, %s" % (sT0, sG, sT1, sW, sKV[0], sT0, sT1))
    for i in range(1, 4):
        A("s_add_u32 %s, %s, %d" % (sKV[i], sKV[0], 6144 * i))
    for b, n in ((X, 1280), (K, 50331648), (V, 50331648), (W3, 1966080), (WO, 7864320), (W2, 1966080), (OUT, 1280), (WS, 268435456)):
        A("s_mov_b32 s%d, %d\ns_mov_b32 s%d, 0x20000" % (b + 2, n, b + 3))
    A("s_mov_b32 s%d, 0x20000" % (WA + 3))
    A("s_cmp_ge_u32 %s, 4\ns_cbranch_scc1 L_young" % sW)

    if prio: A("s_setprio 2")
    A("s_cmp_eq_u32 %s, 3" % sW)
    A("s_cselect_b32 %s, 3072, 12288" % sSTR) if False else None
    A("s_mov_b32 %s, 12288\ns_cselect_b32 %s, 3072, %s" % (sSTR, sSTR, sSTR))
    A("s_mov_b32 s%d, 7864320\ns_cselect_b32 s%d, 1966080, s%d" % (WA + 2, WA + 2, WA + 2))
    A("s_mov_b32 %s, 384\ns_cselect_b32 %s, 96, %s" % (sT0, sT0, sT0))
    A("s_cselect_b32 %s, 0, %s" % (sT1, sW))
    A("s_cselect_b32 %s, 6, 8" % sT2)
    A("s_mul_i32 %s, %s, %s\ns_lshl_b32 %s, %s, 7\ns_add_u32 %s, %s, %s" % (sT0, sT0, sH, sT1, sT1, sT0, sT0, sT1))
    A("s_mul_i32 %s, %s, 80\ns_mul_i32 %s, %s, %s\ns_add_u32 %s, %s, %s" % (sT1, sS, sT1, sT1, sSTR, sAO, sT0, sT1))
    vAo, vXs, vXr = vT, vT + 1, vT + 2
    A("s_mul_i32 %s, %s, 10" % (sT1, sSTR))
    A("v_mul_lo_u32 v%d, v%d, %s\nv_lshl_add_u32 v%d, v%d, 4, v%d" % (vAo, vR, sT1, vAo, vC, vAo))
    A("v_cmp_gt_u32 vcc, %s, v%d\nv_mov_b32 v%d, 0x%x\nv_cndmask_b32 v%d, v%d, v%d, vcc" % (sT2, vC, vXs, OOB, vAo, vXs, vAo))
    A("v_mul_u32_u24 v%d, 20, v0\nv_mul_u32_u24 v%d, 20, v%d" % (vXs, vXr, vR))
    A("s_mul_i32 %s, %s, 160" % (sT1, sS))
    A("s_waitcnt lgkmcnt(0)")
    stamp(1)
    A("s_mov_b64 s[%d:%d], s[4:5]" % (X, X + 1))
    A("s_cmp_eq_u32 %s, 3\ns_cselect_b64 s[%d:%d], s[16:17], s[10:11]" % (sW, WA, WA + 1))
    XS, XR = 24, 30
    A("buffer_load_dwordx4 %s, v%d, %s, 0 offen" % (q4(XS), vXs, srd(X)))
    A("buffer_load_dword v%d, v%d, %s, 0 offen offset:16" % (XS + 4, vXs, srd(X)))
    A("buffer_load_dwordx4 %s, v%d, %s, %s offen" % (q4(XR), vXr, srd(X), sT1))
    A("buffer_load_dword v%d, v%d, %s, %s offen offset:16" % (XR + 4, vXr, srd(X), sT1))
    A("s_mov_b32 %s, %s" % (sT0, sAO))
    for g in range(10):
        A("buffer_load_dwordx4 %s, v%d, %s, %s offen %s" % (q4(VR + 4 * g), vAo, srd(WA), sT0, polw))
        if g < 9: A("s_add_u32 %s, %s, %s" % (sT0, sT0, sSTR))
    def srds():
        A("s_load_dword %s, s[26:27], 0" % sTAG)
        for b, p in ((K, 6), (V, 8), (WO, 12), (W3, 18), (W2, 20), (OUT, 22), (WS, 26)):
            A("s_mov_b64 s[%d:%d], s[%d:%d]" % (b, b + 1, p, p + 1))
        if stamps:
            for r in range(4, 24, 2): A("s_mov_b32 s%d, 0" % r)
    srds()
    A("s_cmp_lg_u32 %s, 3\ns_cbranch_scc1 L_a_no3" % sW)
    A("s_mov_b32 %s, %s" % (sT0, sAO))
    for g in range(10):
        A("buffer_load_dwordx4 %s, v%d, %s, %s offen %s" % (q4(VR + 40 + 4 * g), vAo, srd(W3), sT0, polw))
        if g < 9: A("s_add_u32 %s, %s, %s" % (sT0, sT0, sSTR))
    A("s_waitcnt vmcnt(20)\ns_branch L_a_ln")
    A("L_a_no3:\ns_waitcnt vmcnt(10)")
    A("L_a_ln:")
    def masks():
        A("v_and_b32 v%d, 1, v%d\nv_lshlrev_b32 v%d, 4, v%d\nv_mov_b32 v%d, 0xffff\nv_lshlrev_b32 v%d, v%d, v%d" % (vT + 3, vC, vT + 3, vT + 3, vT + 4, vT + 3, vT + 3, vT + 4))
        A("v_lshrrev_b32 v%d, 1, v%d" % (vT + 4, vC))
        for i in range(4):
            A("v_cmp_eq_u32 vcc, %d, v%d\nv_cndmask_b32 v%d, 0, v%d, vcc" % (i, vT + 4, vM + i, vT + 3))
    masks()
    F = 36
    for i in range(5):
        A("v_lshlrev_b32 v%d, 16, v%d\nv_and_b32 v%d, 0xffff0000, v%d" % (F + 2 * i, XS + i, F + 2 * i + 1, XS + i))
    vSum, vTmp, vMean, vVar = vT + 3, vT + 4, vT + 5, vT + 6
    A("v_add_f32 v%d, v%d, v%d" % (vSum, F, F + 1))
    for i in range(2, 10):
        A("v_add_f32 v%d, v%d, v%d" % (vSum, vSum, F + i))
    allreduce("v_add_f32", vSum, vTmp)
    A("v_mul_f32 v%d, 0x%x, v%d" % (vMean, f2u(1 / 640), vSum))
    for i in range(10):
        A("v_sub_f32 v%d, v%d, v%d" % (F + i, F + i, vMean))
    A("v_mul_f32 v%d, v%d, v%d" % (vSum, F, F))
    for i in range(1, 10):
        A("v_fmac_f32 v%d, v%d, v%d" % (vSum, F + i, F + i))
    allreduce("v_add_f32", vSum, vTmp)
    A("v_mul_f32 v%d, 0x%x, v%d" % (vVar, f2u(1 / 640), vSum))
    A("v_cvt_pk_bf16_f32 v%d, v%d, v%d" % (vTmp, vMean, vVar))
    A("v_lshlrev_b32 v%d, 16, v%d\nv_and_b32 v%d, 0xffff0000, v%d" % (vMean, vTmp, vVar, vTmp))
    A("v_add_f32 v%d, 0x%x, v%d" % (vVar, f2u(1e-5), vVar))
    A("v_cvt_pk_bf16_f32 v%d, v%d, v%d\nv_lshlrev_b32 v%d, 16, v%d" % (vVar, vVar, vVar, vVar, vVar))
    A("v_sqrt_f32 v%d, v%d" % (vVar, vVar))
    A("v_cvt_pk_bf16_f32 v%d, v%d, v%d\nv_lshlrev_b32 v%d, 16, v%d" % (vVar, vVar, vVar, vVar, vVar))
    A("v_rcp_f32 v%d, v%d" % (vVar, vVar))
    for i in range(5):
        A("v_lshlrev_b32 v%d, 16, v%d\nv_and_b32 v%d, 0xffff0000, v%d" % (F + 2 * i, XR + i, F + 2 * i + 1, XR + i))
    for i in range(10):
        A("v_sub_f32 v%d, v%d, v%d" % (F + i, F + i, vMean))
    for i in range(5):
        A("v_cvt_pk_bf16_f32 v%d, v%d, v%d" % (XR + i, F + 2 * i, F + 2 * i + 1))
    for i in range(5):
        A("v_lshlrev_b32 v%d, 16, v%d\nv_and_b32 v%d, 0xffff0000, v%d" % (F + 2 * i, XR + i, F + 2 * i + 1, XR + i))
    for i in range(10):
        A("v_mul_f32 v%d, v%d, v%d" % (F + i, F + i, vVar))
    for i in range(10):
        A("v_cvt_pk_bf16_f32 v%d, v%d, v%d" % (F + i, F + i, F + i))
    for g in range(10):
        aop(KR + 4 * g, F + g)
    A("s_mul_i32 %s, %s, 2560\ns_lshl_b32 %s, %s, 9\ns_add_u32 %s, %s, %s\ns_add_u32 %s, %s, %d" % (sQW, sG, sT0, sW, sQW, sQW, sT0, sQW, sQW, QOFF))
    A("s_mul_i32 %s, %s, 20480\ns_add_u32 %s, %s, %s\ns_add_u32 %s, %s, %d" % (sQR, sH, sQR, sQR, sT0, sQR, sQR, QOFF))
    vG8 = vT + 1
    A("v_lshlrev_b32 v%d, 3, v0" % vG8)
    A("s_waitcnt vmcnt(0) lgkmcnt(0)")
    stamp(2)
    A("s_add_u32 %s, %s, 0x9e3779b1" % (sTAG, sTAG))
    D1, D2, Z1, Z2 = 48, 52, 24, 26
    A("v_mov_b32 v%d, %s\nv_mov_b32 v%d, %s" % (Z1 + 1, sTAG, Z2 + 1, sTAG))
    for g in range(10):
        A("v_mfma_f32_16x16x32_bf16 %s, %s, %s, %s" % (q4(D1), q4(KR + 4 * g), q4(VR + 4 * g), q4(D1) if g else "0"))
    squeeze([(D1, Z1)])
    A("buffer_store_dwordx2 v[%d:%d], v%d, %s, %s offen %s" % (Z1, Z1 + 1, vG8, srd(WS), sQW, spol))
    A("s_cmp_lg_u32 %s, 3\ns_cbranch_scc1 L_a_pub" % sW)
    for g in range(10):
        A("v_mfma_f32_16x16x32_bf16 %s, %s, %s, %s" % (q4(D2), q4(KR + 4 * g), q4(VR + 40 + 4 * g), q4(D2) if g else "0"))
    squeeze([(D2, Z2)])
    A("buffer_store_dwordx2 v[%d:%d], v%d, %s, %s offen offset:512 %s" % (Z2, Z2 + 1, vG8, srd(WS), sQW, spol))
    A("L_a_pub:")
    stamp(3)
    for n in range(n1): kvload("K", n)
    GA = VR
    def gather_issue(lbl):
        A("s_mov_b32 %s, %s" % (sT0, sQR))
        for p in range(8):
            A("buffer_load_dwordx2 v[%d:%d], v%d, %s, %s offen offset:%d %s" % (GA + 2 * p, GA + 2 * p + 1, vG8, srd(WS), sT0, 2560 * (p & 1), lpol))
            if p & 1 and p < 7: A("s_add_u32 %s, %s, 5120" % (sT0, sT0))
        A("s_cmp_lg_u32 %s, 3\ns_cbranch_scc1 %s" % (sW, lbl))
        A("s_mov_b32 %s, %s" % (sT0, sQR))
        for p in range(8):
            A("buffer_load_dwordx2 v[%d:%d], v%d, %s, %s offen offset:%d %s" % (GA + 16 + 2 * p, GA + 17 + 2 * p, vG8, srd(WS), sT0, 512 + 2560 * (p & 1), lpol))
            if p & 1 and p < 7: A("s_add_u32 %s, %s, 5120" % (sT0, sT0))
        A("%s:" % lbl)
    for p in range(8):
        A("v_mov_b32 v%d, %s\nv_mov_b32 v%d, 0" % (GA + 17 + 2 * p, sTAG, GA + 16 + 2 * p))
    gather_issue("L_g1")
    for n in range(n1, 24): kvload("K", n)
    A("s_mov_b32 %s, %d" % (sCNT, spin))
    A("s_waitcnt vmcnt(%d)" % (24 - n1))
    stamp(4)
    A("L_gchk:")
    A("v_xor_b32 v%d, %s, v%d" % (vT + 3, sTAG, GA + 1))
    for p in range(1, 16):
        A("v_xor_b32 v%d, %s, v%d\nv_or_b32 v%d, v%d, v%d" % (vT + 4, sTAG, GA + 2 * p + 1, vT + 3, vT + 3, vT + 4))
    A("v_cmp_ne_u32 vcc, 0, v%d\ns_cbranch_vccz L_gok" % (vT + 3))
    A("s_sub_u32 %s, %s, 1\ns_cbranch_scc1 L_gok" % (sCNT, sCNT))
    gather_issue("L_g2")
    A("s_waitcnt vmcnt(0)\ns_branch L_gchk")
    A("L_gok:")
    for p in range(1, 8):
        A("v_add_f32 v%d, v%d, v%d\nv_add_f32 v%d, v%d, v%d" % (GA, GA, GA + 2 * p, GA + 16, GA + 16, GA + 16 + 2 * p))
    vCol = vT + 3
    A("v_lshlrev_b32 v%d, 3, v%d" % (vCol, vC))
    A("v_bfe_u32 v%d, v0, 4, 1\nv_lshl_add_u32 v%d, v%d, 2, v%d" % (vT + 4, vCol, vT + 4, vCol))
    A("v_bfe_u32 v%d, v0, 3, 1\nv_lshl_add_u32 v%d, v%d, 1, v%d" % (vT + 4, vCol, vT + 4, vCol))
    A("v_lshrrev_b32 v%d, 5, v0\nv_add_u32 v%d, v%d, v%d" % (vT + 4, vCol, vCol, vT + 4))
    A("v_cvt_pk_bf16_f32 v%d, v%d, v%d" % (GA, GA, GA + 16))
    A("s_cmp_eq_u32 %s, 3\ns_cbranch_scc1 L_ffn" % sW)
    A("s_lshl_b32 %s, %s, 7\nv_lshl_add_u32 v%d, v%d, 1, %s" % (sT0, sW, vCol, vCol, sT0))
    A("ds_write_b16 v%d, v%d offset:%d" % (vCol, GA, LQ))
    A("s_branch L_b1")
    A("L_ffn:")
    g_, u_, e_ = GA + 1, GA + 2, GA + 3
    A("v_lshlrev_b32 v%d, 16, v%d\nv_and_b32 v%d, 0xffff0000, v%d" % (g_, GA, u_, GA))
    A("v_mul_f32 v%d, 0x%x, v%d\nv_exp_f32 v%d, v%d\nv_add_f32 v%d, 1.0, v%d\nv_rcp_f32 v%d, v%d\nv_mul_f32 v%d, v%d, v%d" % (e_, f2u(-1.4426950408889634), g_, e_, e_, e_, e_, e_, e_, g_, g_, e_))
    A("v_cvt_pk_bf16_f32 v%d, v%d, v%d\nv_lshlrev_b32 v%d, 16, v%d\nv_mul_f32 v%d, v%d, v%d\nv_cvt_pk_bf16_f32 v%d, v%d, v%d" % (g_, g_, g_, g_, g_, g_, g_, u_, g_, g_, g_))
    A("v_lshlrev_b32 v%d, 2, v%d\nds_write_b32 v%d, v%d offset:%d" % (vCol, vCol, vCol, g_, LH))
    A("s_branch L_b1")

    A("L_young:")
    A("s_waitcnt lgkmcnt(0)")
    stamp(1)
    A("s_mov_b64 s[%d:%d], s[4:5]" % (X, X + 1))
    srds()
    for n in range(24): kvload("K", n)
    stamp(2)
    for n in range(n2): kvload("V", n)
    stamp(3)
    masks()
    A("s_waitcnt vmcnt(%d) lgkmcnt(0)" % n2)
    stamp(4)
    A("s_add_u32 %s, %s, 0x9e3779b1" % (sTAG, sTAG))

    A("L_b1:")
    A("s_waitcnt lgkmcnt(0)\ns_barrier")
    stamp(5)
    A("v_lshlrev_b32 v%d, 4, v%d" % (vT, vC))
    for t in range(3):
        A("ds_read_b128 %s, v%d offset:%d" % (q4(vQ + 4 * t), vT, LQ + 128 * t))
    A("v_bfe_u32 v%d, v0, 3, 1\nv_mul_u32_u24 v%d, 3, v%d\nv_lshrrev_b32 v%d, 4, v0\nv_add_u32 v%d, v%d, v%d" % (vT + 1, vT + 1, vT + 1, vT + 2, vT + 1, vT + 1, vT + 2))
    A("s_mul_i32 %s, %s, 24\nv_lshl_add_u32 v%d, v%d, 2, %s" % (sT0, sW, vT + 1, vT + 1, sT0))
    A("ds_read_b32 v%d, v%d offset:%d" % (vT + 3, vT + 1, LH))
    cnt = {"o": 0, "y": n2}
    slotn = [0]
    def slot(i, first=False):
        a, b = vo[i], vy[i]
        k = slotn[0]; slotn[0] += 1
        if a == 0 and b == 0 and not first: return
        A("s_cmp_ge_u32 %s, 4\ns_cbranch_scc1 L_sy%d" % (sW, k))
        for _ in range(a):
            kvload("V", cnt["o"]); cnt["o"] += 1
        if first: A("s_waitcnt vmcnt(%d)" % a)
        if b:
            A("s_branch L_se%d" % k)
        A("L_sy%d:" % k)
        for _ in range(b):
            kvload("V", cnt["y"]); cnt["y"] += 1
        if b: A("L_se%d:" % k)
    slot(0, True)
    stamp(6)
    A("v_and_b32 v%d, 15, v0\nv_lshlrev_b32 v%d, 4, v%d" % (vT + 4, vT + 5, vT + 4))
    A("v_mul_u32_u24 v%d, 20480, v%d\nv_add_u32 v%d, v%d, v%d" % (vWOo, vT + 2, vWOo, vWOo, vT + 5))
    A("v_mul_u32_u24 v%d, 1280, v%d\nv_add_u32 v%d, v%d, v%d" % (vW2o, vT + 2, vW2o, vW2o, vT + 5))
    A("v_mov_b32 v%d, 0x%x\nv_cmp_gt_u32 vcc, 10, v%d" % (vT + 5, OOB, vT + 4))
    A("v_cndmask_b32 v%d, v%d, v%d, vcc\nv_cndmask_b32 v%d, v%d, v%d, vcc" % (vWOo, vT + 5, vWOo, vW2o, vT + 5, vW2o))
    A("v_cmp_gt_u32 vcc, 3, v%d\nv_cndmask_b32 v%d, v%d, v%d, vcc" % (vT + 2, vW2o, vT + 5, vW2o))
    A("s_waitcnt lgkmcnt(0)")
    aop(vA2, vT + 3)
    for gp in range(4):
        g0, g1 = 2 * gp, 2 * gp + 1
        A("v_mov_b32 v%d, 0\nv_mov_b32 v%d, 0" % (vS + g0, vS + g1))
        for i in range(12):
            A("v_dot2c_f32_bf16 v%d, v%d, v%d" % (vS + g0, KR + 12 * g0 + i, vQ + i))
            A("v_dot2c_f32_bf16 v%d, v%d, v%d" % (vS + g1, KR + 12 * g1 + i, vQ + i))
        slot(1 + gp)
    bfly8("v_add_f32", [vS + g for g in range(8)])
    for rnd in range(2):
        for gp in range(4):
            A("v_cvt_pk_bf16_f32 v%d, v%d, v%d" % (vT + gp, vS + 2 * gp, vS + 2 * gp + 1))
        for gp in range(4):
            A("v_lshlrev_b32 v%d, 16, v%d\nv_and_b32 v%d, 0xffff0000, v%d" % (vS + 2 * gp, vT + gp, vS + 2 * gp + 1, vT + gp))
        c = f2u(192 ** -0.5) if rnd == 0 else f2u(1.4426950408889634)
        for g in range(8):
            A("v_mul_f32 v%d, 0x%x, v%d" % (vS + g, c, vS + g))
    vMx, vLs = vT + 4, vT + 5
    A("v_max3_f32 v%d, v%d, v%d, v%d\nv_max3_f32 v%d, v%d, v%d, v%d\nv_max3_f32 v%d, v%d, v%d, v%d\nv_max_f32 v%d, v%d, v%d" % (
        vMx, vS, vS + 1, vS + 2, vT, vS + 3, vS + 4, vS + 5, vMx, vMx, vS + 6, vS + 7, vMx, vMx, vT))
    A("v_max_f32_dpp v%d, v%d, v%d row_ror:8 row_mask:0xf bank_mask:0xf" % (vMx, vMx, vMx))
    rows("v_max_f32", vMx, vT)
    for g in range(8):
        A("v_sub_f32 v%d, v%d, v%d" % (vS + g, vS + g, vMx))
    for g in range(8):
        A("v_exp_f32 v%d, v%d" % (vS + g, vS + g))
    A("v_add_f32 v%d, v%d, v%d" % (vLs, vS, vS + 1))
    for g in range(2, 8):
        A("v_add_f32 v%d, v%d, v%d" % (vLs, vLs, vS + g))
    A("v_add_f32_dpp v%d, v%d, v%d row_ror:8 row_mask:0xf bank_mask:0xf" % (vLs, vLs, vLs))
    rows("v_add_f32", vLs, vT)
    A("s_lshl_b32 %s, %s, 3\nv_mov_b32 v%d, %s" % (sT0, sW, vT, sT0))
    A("ds_write_b64 v%d, v[%d:%d] offset:%d" % (vT, vMx, vLs, LS))
    for g in range(8):
        A("v_cvt_pk_bf16_f32 v%d, v%d, v%d" % (vS + g, vS + g, vS + g))
    for g in range(8):
        aop(PA + 4 * g, vS + g)
    stamp(7)
    slot(5)
    A("s_waitcnt lgkmcnt(0)\ns_barrier")
    stamp(8)
    ST = vT + 8
    A("v_lshlrev_b32 v%d, 3, v%d\nds_read_b64 v[%d:%d], v%d offset:%d" % (vT, vC, vT + 6, vT + 7, vT, LS))
    A("s_lshl_b32 %s, %s, 4\ns_add_u32 %s, %s, %d" % (sT0, sG, sT0, sT0, SOFF))
    A("s_cmp_eq_u32 %s, 4\ns_cselect_b32 %s, 0, -1" % (sW, sT1))
    A("v_mov_b32 v%d, 0x%x\nv_cmp_eq_u32 vcc, %s, v0\nv_cndmask_b32 v%d, v%d, 0, vcc" % (vT + 1, OOB, sT1, vT + 1, vT + 1))
    A("v_mov_b32 v%d, %s" % (ST + 2, sTAG))
    A("s_waitcnt lgkmcnt(0)")
    A("v_mov_b32 v%d, v%d" % (ST, vT + 6))
    bfly8("v_max_f32", [ST])
    A("v_sub_f32 v%d, v%d, v%d\nv_sub_f32 v%d, v%d, v%d" % (vT + 6, vT + 6, ST, vF, vMx, ST))
    A("v_exp_f32 v%d, v%d\nv_exp_f32 v%d, v%d" % (vT + 6, vT + 6, vF, vF))
    A("v_mul_f32 v%d, v%d, v%d" % (ST + 1, vT + 6, vT + 7))
    bfly8("v_add_f32", [ST + 1])
    A("buffer_store_dwordx3 v[%d:%d], v%d, %s, %s offen %s" % (ST, ST + 2, vT + 1, srd(WS), sT0, spol))
    slot(6)
    sWO, sW2 = sAO, sQW
    A("s_lshr_b32 %s, %s, 2\ns_and_b32 %s, %s, 3\ns_lshl_b32 %s, %s, 1\ns_add_u32 %s, %s, %s" % (sT0, sW, sT1, sW, sT1, sT1, sT0, sT0, sT1))
    A("s_mul_i32 %s, %s, 192\ns_add_u32 %s, %s, %s\ns_mul_i32 %s, %s, 1280\ns_mul_i32 %s, %s, 160\ns_add_u32 %s, %s, %s" % (sT1, sH, sT0, sT0, sT1, sT0, sT0, sT2, sS, sWO, sT0, sT2))
    A("s_mul_i32 %s, %s, 48\ns_mul_i32 %s, %s, 6\ns_add_u32 %s, %s, %s\ns_mul_i32 %s, %s, 1280\ns_add_u32 %s, %s, %s" % (sT0, sH, sT1, sW, sT0, sT0, sT1, sT0, sT0, sW2, sT0, sT2))
    def wo_issue():
        A("buffer_load_dwordx4 %s, v%d, %s, %s offen %s" % (q4(WOR + 24), vW2o, srd(W2), sW2, polo))
        A("buffer_load_dwordx4 %s, v%d, %s, %s offen offset:3840 %s" % (q4(WOR + 28), vW2o, srd(W2), sW2, polo))
        for u in range(3):
            for ih in range(2):
                A("s_add_u32 %s, %s, %d" % (sT0, sWO, (64 * u + 8 * ih) * 1280))
                A("buffer_load_dwordx4 %s, v%d, %s, %s offen %s" % (q4(WOR + 4 * (u + 3 * ih)), vWOo, srd(WO), sT0, polo))
    A("s_cmp_ge_u32 %s, 4\ns_cbranch_scc1 L_pvy" % sW)
    wo_issue()
    A("s_branch L_pv\nL_pvy:\ns_waitcnt vmcnt(0)\nL_pv:")
    stamp(9)
    vOW, vOR, vOS, vOG, vSG, vFW, vFR, vFS = 24, 25, 26, 27, 28, 29, 30, 31
    A("s_mul_i32 %s, %s, %d\nv_lshl_add_u32 v%d, v0, 4, %s" % (sT0, sW, SO_STR, vOW, sT0))
    A("s_lshl_b32 %s, %s, 7\nv_lshl_add_u32 v%d, v%d, 4, %s" % (sT1, sW, vOS, vR, sT1))
    A("v_mul_u32_u24 v%d, %d, v%d\nv_add_u32 v%d, v%d, v%d" % (vOR, SO_STR, vC, vOR, vOR, vOS))
    A("v_lshl_add_u32 v%d, v%d, 10, v%d" % (vOG, vC, vOS))
    A("v_mov_b32 v%d, 0x%x\nv_cmp_eq_u32 vcc, 0, v%d\nv_cndmask_b32 v%d, v%d, v%d, vcc" % (vT, OOB, vC, vOS, vT, vOS))
    A("v_lshlrev_b32 v%d, 4, v%d" % (vSG, vC))
    A("v_lshrrev_b32 v%d, 5, v0\nv_mul_u32_u24 v%d, %d, v%d\ns_mul_i32 %s, %s, %d" % (vT + 1, vFW, SF_STR, vT + 1, sT0, sW, 2 * SF_STR))
    A("v_and_b32 v%d, 15, v0\nv_lshl_add_u32 v%d, v%d, 5, v%d\nv_bfe_u32 v%d, v0, 4, 1\nv_lshl_add_u32 v%d, v%d, 4, v%d\nv_add_u32 v%d, %s, v%d" % (
        vT + 2, vFW, vT + 2, vFW, vT + 3, vFW, vT + 3, vFW, vFW, sT0, vFW))
    A("v_mul_u32_u24 v%d, %d, v%d\nv_lshrrev_b32 v%d, 4, v0\nv_lshl_add_u32 v%d, v%d, 4, v%d\ns_lshl_b32 %s, %s, 6\nv_add_u32 v%d, %s, v%d" % (
        vFR, SF_STR, vT + 2, vT + 3, vFR, vT + 3, vFR, sT0, sW, vFR, sT0, vFR))
    sOW, sOR, sSR, sFW, sFR = sKV[0], sKV[1], sKV[2], sKV[3], sQR
    if fin_cons:
        A("s_lshl_b32 %s, %s, 12\nv_lshl_add_u32 v%d, v%d, 9, %s\nv_cndmask_b32 v%d, v%d, v%d, vcc" % (sT0, sW, vFS, vR, sT0, vFS, vT, vFS))
        A("s_mul_i32 %s, %s, 20480\ns_lshl_b32 %s, %s, 4\ns_add_u32 %s, %s, %s\ns_add_u32 %s, %s, %d" % (sT0, sS, sT1, sH, sFW, sT0, sT1, sFW, sFW, FOFF))
        A("s_lshl_b32 %s, %s, 10\ns_add_u32 %s, %s, %s\ns_add_u32 %s, %s, %d" % (sT1, sH, sFR, sT0, sT1, sFR, sFR, FOFF))
    else:
        A("v_mov_b32 v%d, v%d" % (vFS, vOS))
        A("s_mul_i32 %s, %s, 640\ns_add_u32 %s, %s, %d" % (sFW, sG, sFW, sFW, FOFF))
        A("s_mul_i32 %s, %s, 640\ns_lshl_b32 %s, %s, 5\ns_add_u32 %s, %s, %s\ns_add_u32 %s, %s, %d" % (sT0, sS, sT1, sH, sFR, sT0, sT1, sFR, sFR, FOFF))
    A("s_lshl_b32 %s, %s, 10\ns_add_u32 %s, %s, %d" % (sOW, sG, sOW, sOW, OOFF))
    A("s_lshl_b32 %s, %s, 13\ns_add_u32 %s, %s, %d" % (sOR, sH, sOR, sOR, OOFF))
    A("s_lshl_b32 %s, %s, 7\ns_add_u32 %s, %s, %d" % (sSR, sH, sSR, sSR, SOFF))
    for g in range(8):
        A("s_waitcnt vmcnt(%d)" % (8 + 3 * (7 - g)))
        for t in range(3):
            A("v_mfma_f32_16x16x32_bf16 %s, %s, %s, %s" % (q4(vD + 4 * t), q4(PA + 4 * g), q4(VR + 12 * g + 4 * t), q4(vD + 4 * t) if g else "0"))
    stamp(10)
    Z = vT
    squeeze([(vD + 4 * t, Z + t) for t in range(3)])
    for t in range(3):
        A("v_mul_f32 v%d, v%d, v%d" % (Z + t, Z + t, vF))
    A("ds_write_b128 v%d, %s offset:%d" % (vOW, q4(Z), LO))
    A("s_cmp_lt_u32 %s, 4\ns_cbranch_scc1 L_b3" % sW)
    wo_issue()
    A("L_b3:")
    A("s_waitcnt lgkmcnt(0)\ns_barrier")
    stamp(11)
    O1 = vT + 4
    A("ds_read_b96 v[%d:%d], v%d offset:%d" % (O1, O1 + 2, vOR, LO))
    A("v_mov_b32 v%d, %s" % (O1 + 3, sTAG))
    A("s_mov_b32 %s, %d" % (sCNT, spin))
    A("s_waitcnt lgkmcnt(0)")
    bfly8("v_add_f32", [O1, O1 + 1, O1 + 2])
    A("buffer_store_dwordx4 %s, v%d, %s, %s offen %s" % (q4(O1), vOS, srd(WS), sOW, spol))
    stamp(12)
    OG = vT + 12
    A("L_st:")
    A("buffer_load_dwordx3 v[%d:%d], v%d, %s, %s offen %s" % (ST, ST + 2, vSG, srd(WS), sSR, lpol))
    A("buffer_load_dwordx4 %s, v%d, %s, %s offen %s" % (q4(OG), vOG, srd(WS), sOR, lpol))
    A("s_waitcnt vmcnt(1)")
    A("v_cmp_ne_u32 vcc, %s, v%d\ns_cbranch_vccz L_stok" % (sTAG, ST + 2))
    A("s_waitcnt vmcnt(0)\ns_sub_u32 %s, %s, 1\ns_cbranch_scc0 L_st" % (sCNT, sCNT))
    A("L_stok:")
    stamp(13)
    Da, Db = vD, vD + 4
    A("v_mfma_f32_16x16x32_bf16 %s, %s, %s, 0" % (q4(Da), q4(vA2), q4(WOR + 24)))
    A("v_mfma_f32_16x16x32_bf16 %s, %s, %s, 0" % (q4(Db), q4(vA2), q4(WOR + 28)))
    A("v_mov_b32 v%d, v%d" % (vT, ST))
    bfly8("v_max_f32", [vT])
    A("v_sub_f32 v%d, v%d, v%d\nv_exp_f32 v%d, v%d\nv_mul_f32 v%d, v%d, v%d" % (ST, ST, vT, ST, ST, ST + 1, ST + 1, ST))
    bfly8("v_add_f32", [ST + 1])
    A("v_rcp_f32 v%d, v%d\nv_mul_f32 v%d, v%d, v%d" % (ST + 1, ST + 1, ST, ST, ST + 1))
    A("s_mov_b32 %s, %d" % (sCNT, spin))
    A("L_ochk:")
    A("s_waitcnt vmcnt(0)")
    A("v_cmp_ne_u32 vcc, %s, v%d\ns_cbranch_vccz L_ook" % (sTAG, OG + 3))
    A("buffer_load_dwordx4 %s, v%d, %s, %s offen %s" % (q4(OG), vOG, srd(WS), sOR, lpol))
    A("s_sub_u32 %s, %s, 1\ns_cbranch_scc0 L_ochk" % (sCNT, sCNT))
    A("s_waitcnt vmcnt(0)")
    A("L_ook:")
    stamp(14)
    for u in range(3):
        A("v_mul_f32 v%d, v%d, v%d" % (OG + u, OG + u, ST))
    bfly8("v_add_f32", [OG, OG + 1, OG + 2])
    for u in range(3):
        A("v_cvt_pk_bf16_f32 v%d, v%d, v%d" % (OG + u, OG + u, OG + u))
    for u in range(3):
        aop(PA + 4 * u, OG + u)
    for u in range(3):
        A("v_mfma_f32_16x16x32_bf16 %s, %s, %s, %s" % (q4(Da), q4(PA + 4 * u), q4(WOR + 4 * u), q4(Da)))
        A("v_mfma_f32_16x16x32_bf16 %s, %s, %s, %s" % (q4(Db), q4(PA + 4 * u), q4(WOR + 12 + 4 * u), q4(Db)))
    for x in range(4):
        A("v_mov_b32_dpp v%d, v%d quad_perm:[0,1,2,3] row_mask:0xc bank_mask:0xf" % (Da + x, Db + x))
    A("ds_write_b128 v%d, %s offset:%d" % (vFW, q4(Da), LF))
    A("s_waitcnt lgkmcnt(0)\ns_barrier")
    stamp(15)
    A("s_cmp_ge_u32 %s, 5\ns_cbranch_scc1 L_fin" % sW)
    R = vT
    A("ds_read_b128 %s, v%d offset:%d" % (q4(R), vFR, LF))
    A("v_mov_b32 v%d, %s" % (R + 6, sTAG))
    A("s_waitcnt lgkmcnt(0)")
    A("v_add_f32_dpp v%d, v%d, v%d row_ror:8 row_mask:0xf bank_mask:0x3" % (R + 4, R, R))
    A("v_add_f32_dpp v%d, v%d, v%d row_ror:8 row_mask:0xf bank_mask:0x3" % (R + 5, R + 1, R + 1))
    A("v_add_f32_dpp v%d, v%d, v%d row_ror:8 row_mask:0xf bank_mask:0xc" % (R + 4, R + 2, R + 2))
    A("v_add_f32_dpp v%d, v%d, v%d row_ror:8 row_mask:0xf bank_mask:0xc" % (R + 5, R + 3, R + 3))
    bfly8("v_add_f32", [R + 4, R + 5])
    A("buffer_store_dwordx3 v[%d:%d], v%d, %s, %s offen %s" % (R + 4, R + 6, vFS, srd(WS), sFW, spol))
    stamp(16)
    A("s_branch L_done")
    A("L_fin:")
    A("s_cmp_lg_u32 %s, 7\ns_cbranch_scc1 L_done" % sW)
    A("s_cmp_ge_u32 %s, 20\ns_cbranch_scc1 L_done" % sH)
    vFa, vOa = vT, vT + 1
    A("v_lshrrev_b32 v%d, 5, v0" % vOa)
    if fin_cons:
        A("v_lshlrev_b32 v%d, 4, v0" % vFa)
    else:
        A("v_and_b32 v%d, 31, v0\nv_mul_u32_u24 v%d, 5120, v%d\nv_lshl_add_u32 v%d, v%d, 4, v%d" % (vFa, vFa, vFa, vFa, vOa, vFa))
    A("v_lshlrev_b32 v%d, 2, v%d" % (vOa, vOa))
    A("s_mul_i32 %s, %s, 160\ns_lshl_b32 %s, %s, 3\ns_add_u32 %s, %s, %s" % (sT0, sS, sT1, sH, sT0, sT0, sT1))
    A("buffer_load_dword v%d, v%d, %s, %s offen" % (vX2, vOa, srd(X), sT0))
    A("v_and_b32 v%d, 31, v0\nv_mov_b32 v%d, 0x%x\nv_cmp_eq_u32 vcc, 0, v%d\nv_cndmask_b32 v%d, v%d, v%d, vcc" % (vT + 2, vT + 3, OOB, vT + 2, vOa, vT + 3, vOa))
    FG = vT + 4
    A("s_mov_b32 %s, %d" % (sCNT, spin))
    A("L_fchk:")
    A("buffer_load_dwordx3 v[%d:%d], v%d, %s, %s offen %s" % (FG, FG + 2, vFa, srd(WS), sFR, lpol))
    A("s_waitcnt vmcnt(0)")
    A("v_cmp_ne_u32 vcc, %s, v%d\ns_cbranch_vccz L_fok" % (sTAG, FG + 2))
    A("s_sub_u32 %s, %s, 1\ns_cbranch_scc0 L_fchk" % (sCNT, sCNT))
    A("L_fok:")
    stamp(16)
    for m in ("quad_perm:[1,0,3,2]", "quad_perm:[2,3,0,1]", "row_half_mirror", "row_mirror"):
        for v in (FG, FG + 1):
            A("v_add_f32_dpp v%d, v%d, v%d %s row_mask:0xf bank_mask:0xf" % (v, v, v, m))
    A("v_mov_b32 v%d, v%d\nv_mov_b32 v%d, v%d" % (FG + 2, FG, FG + 3, FG + 1))
    A("v_lshlrev_b32 v%d, 16, v%d\nv_and_b32 v%d, 0xffff0000, v%d" % (vT + 2, vX2, vT + 3, vX2))
    A("v_permlane16_swap_b32 v%d, v%d\nv_permlane16_swap_b32 v%d, v%d" % (FG, FG + 2, FG + 1, FG + 3))
    A("v_add_f32 v%d, v%d, v%d\nv_add_f32 v%d, v%d, v%d" % (FG, FG, FG + 2, FG + 1, FG + 1, FG + 3))
    A("v_add_f32 v%d, v%d, v%d\nv_add_f32 v%d, v%d, v%d" % (FG, FG, vT + 2, FG + 1, FG + 1, vT + 3))
    A("v_cvt_pk_bf16_f32 v%d, v%d, v%d" % (FG, FG, FG + 1))
    A("buffer_store_dword v%d, v%d, %s, %s offen" % (FG, vOa, srd(OUT), sT0))
    A("s_cmp_lg_u32 %s, 0\ns_cbranch_scc1 L_done" % sG)
    A("v_mov_b32 v%d, %s\nv_mov_b32 v%d, 0" % (vT + 2, sTAG, vT + 3))
    A("buffer_store_dword v%d, v%d, %s, 0 offen" % (vT + 2, vT + 3, srd(WS)))
    A("L_done:")
    if stamps:
        stamp(17)
        A("s_waitcnt lgkmcnt(0)\nv_mov_b32 v5, 0")
        for i in range(nst[0]):
            A("v_writelane_b32 v5, s%d, %d" % (stamp_regs[i], i))
        A("s_getreg_b32 %s, hwreg(HW_REG_XCC_ID)\ns_getreg_b32 %s, hwreg(HW_REG_HW_ID)" % (sT0, sT1))
        A("v_writelane_b32 v5, %s, 62\nv_writelane_b32 v5, %s, 63\nv_writelane_b32 v5, %s, 61" % (sT0, sT1, sCNT))
        A("s_lshl_b32 %s, s2, 3\ns_add_u32 %s, %s, %s\ns_lshl_b32 %s, %s, 8\ns_add_u32 %s, %s, %d" % (sT0, sT0, sT0, sW, sT0, sT0, sT0, sT0, STAMP_OFF))
        A("v_lshlrev_b32 v2, 2, v0\nbuffer_store_dword v5, v2, %s, %s offen" % (srd(WS), sT0))
    A("L_end:\ns_endpgm")
    lines = hazard.fix(A.lines, verbose=True)
    return wrap("\n".join(lines) + "\n", 256, 512, LDS_BYTES, 256), nst[0]

if __name__ == "__main__":
    txt, _ = gen()
    open("v1.s", "w").write(txt)
    txt, n = gen(stamps=True)
    open("v1_st.s", "w").write(txt)
    print("stamps", n)
```
